```python
import torch

def _softmax(x, axis=-1):
    return torch.softmax(x, dim=axis)
def _gelu(x):
    return torch.nn.functional.gelu(x, approximate="tanh")
def _silu(x):
    return torch.nn.functional.silu(x)
def _sigmoid(x):
    return torch.sigmoid(x)
def _layernorm(x, axis=-1, eps=1e-5):
    m = x.mean(dim=axis, keepdim=True)
    v = x.var(dim=axis, keepdim=True, unbiased=False)
    return (x - m) / torch.sqrt(v + eps)
def _scatter_add(tgt, idx, src, axis=0):
    return tgt.clone().index_add_(axis, idx, src)
def _segment_sum(src, seg, n):
    out = torch.zeros((n,) + src.shape[1:], dtype=src.dtype)
    return out.index_add_(0, seg, src)
def _pad(x, pw):
    flat = tuple(v for pair in reversed(pw) for v in pair)
    return torch.nn.functional.pad(x, flat)

kernel_name = 'standalone__rmsnorm__sampling'

def setup_inputs():

    _w = (lambda a: (lambda t: t.to(torch.bfloat16) if t.is_floating_point() else t)(torch.as_tensor(a)))
    B, S, D = 1024, 8, 1024
    return {
        "x": _w((lambda *s: torch.randn(*s, dtype=torch.bfloat16) * 0.05)(B, S, D)),
        "g": _w((lambda *s: torch.randn(*s, dtype=torch.bfloat16) * 0.05)(D) + 1.0),
    }

def reference(x, g):
    rms = torch.sqrt((x * x).mean(axis=-1, keepdims=True) + 1e-6)
    return x / rms * g
```

```python
import argparse

NAME = "standalone__rmsnorm__sampling"
ROWS = 8192
HEADER = """; Kernarg layout for this problem (40 bytes, ptrs only, base s[0:1]):
;   offset  32: d_ws      268435456 bytes workspace
"""
DPP = ("quad_perm:[1,0,3,2] row_mask:0xf", "quad_perm:[2,3,0,1] row_mask:0xf",
       "row_half_mirror row_mask:0xf", "row_mirror row_mask:0xf",
       "row_bcast:15 row_mask:0xa", "row_bcast:31 row_mask:0xc")


def gen(R=1, W=4, ld="", st="", gld="", mimic=1, mode="full", strided=0, sts=None, tail=""):
    nwg = ROWS // (R * W)
    L = []
    e = L.append
    e(HEADER.rstrip())
    e(f"; @launch grid=({nwg},1,1) block=({64*W},1,1) lds=0")
    e('.amdgcn_target "amdgcn-amd-amdhsa--gfx950"')
    e(".text")
    e(f".globl {NAME}_kernel")
    e(".p2align 8")
    e(f".type {NAME}_kernel,@function")
    e(f"{NAME}_kernel:")
    e("    s_load_dwordx4 s[4:7], s[0:1], 0")
    e("    s_load_dwordx2 s[8:9], s[0:1], 16")
    e(f"    s_cmp_ge_u32 s2, {nwg}")
    e("    s_cbranch_scc1 L_end")
    C = R if not strided else strided
    nchunk = R // C
    lg = (C * W * 2048).bit_length() - 1
    e(f"    s_lshl_b32 s3, s2, {lg}")
    e("    v_lshlrev_b32 v1, 4, v0")
    if W > 1:
        e("    v_and_b32 v2, 0xfc00, v1")
        e("    v_and_b32 v1, 0x3f0, v1")
        e(f"    v_lshl_add_u32 v2, v2, {(2*C).bit_length()-1}, v1")
        e("    v_add_u32 v2, s3, v2")
    else:
        e("    v_add_u32 v2, s3, v1")
    chunk_stride = ROWS * 2048 // nchunk
    offs = [(r // C) * chunk_stride + (r % C) * 2048 for r in range(R)]
    groups = {}
    amap = []
    for r in range(R):
        key = (r // C, (r % C) // 4)
        if key not in groups:
            groups[key] = (len(groups), offs[r])
        amap.append((groups[key][0], offs[r] - groups[key][1]))
    bias = 4096 if C > 2 else 0
    naddr = len(groups)
    if bias:
        e(f"    v_add_u32 v2, {bias}, v2")
    for idx, o in list(groups.values())[1:]:
        e(f"    v_add_u32 v{2+idx}, {o}, v2")
    base = (2 + naddr + 1) & ~1
    acc = base
    g0 = (acc + R + 3) & ~3
    glo = g0 + 8
    x0 = glo + 8
    p0 = x0 + 8 * R
    t0 = p0 + 16
    nv = t0 + 2
    for r in range(R):
        e(f"    v_mov_b32 v{acc+r}, 0")
    e("    s_mov_b32 s10, 0xffff0000")
    e("    s_mov_b32 s11, 0x3a800000")
    e("    s_waitcnt lgkmcnt(0)")

    def addr(r, h):
        return f"v{2 + amap[r][0]}", amap[r][1] + h * 1024 - bias

    def stflag(r):
        return sts[r] if sts else st

    if mode == "wo":
        e("    s_waitcnt vmcnt(0)")
        for r in range(R):
            for h in range(2):
                ad, o = addr(r, h)
                x = x0 + 8 * r
                e(f"    global_store_dwordx4 {ad}, v[{x+4*h}:{x+4*h+3}], s[8:9] offset:{o} {stflag(r)}".rstrip())
    else:
        for r in range(R):
            for h in range(2):
                a, o = addr(r, h)
                e(f"    global_load_dwordx4 v[{x0+8*r+4*h}:{x0+8*r+4*h+3}], {a}, s[4:5] offset:{o} {ld}".rstrip())
            if r == 0 and mode != "ro":
                for h in range(2):
                    e(f"    global_load_dwordx4 v[{g0+4*h}:{g0+4*h+3}], v1, s[6:7] offset:{h*1024} {gld}".rstrip())
    if mode == "ro":
        e(f"    s_waitcnt vmcnt({2*R-2})")
    if mode == "copy":
        for r in range(R):
            e(f"    s_waitcnt vmcnt({2*R if r == 0 else 2*(R-1)})")
            for h in range(2):
                ad, o = addr(r, h)
                x = x0 + 8 * r
                e(f"    global_store_dwordx4 {ad}, v[{x+4*h}:{x+4*h+3}], s[8:9] offset:{o} {stflag(r)}".rstrip())
    e(f"    v_mov_b32 v{t0+1}, 0x358637bd")
    for r in range(R if mode == "full" else 0):
        x = x0 + 8 * r
        a = acc + r
        e(f"    s_waitcnt vmcnt({2*R if r == 0 else 2*(R-1)})")
        for i in range(8):
            e(f"    v_dot2c_f32_bf16 v{a}, v{x+i}, v{x+i}")
        if r == 0:
            e(f"    s_waitcnt vmcnt({2*(R-1)})")
            for i in range(8):
                e(f"    v_and_b32 v{glo+i}, 0xffff, v{g0+i}")
                e(f"    v_and_b32 v{g0+i}, s10, v{g0+i}")
        fill = []
        for i in range(8):
            fill.append(f"    v_dot2_f32_bf16 v{p0+2*i}, v{x+i}, v{glo+i}, 0")
            fill.append(f"    v_dot2_f32_bf16 v{p0+2*i+1}, v{x+i}, v{g0+i}, 0")

        def F(k):
            for _ in range(k):
                e(fill.pop(0) if fill else "    s_nop 0")
        F(3)
        for dpp in DPP:
            e(f"    v_add_f32_dpp v{a}, v{a}, v{a} {dpp} bank_mask:0xf")
            if "bcast:31" not in dpp:
                F(2)
        if mimic == 0:
            e(f"    v_fma_f32 v{a}, v{a}, s11, v{t0+1}")
            e(f"    v_rsq_f32 v{a}, v{a}")
            F(1)
        else:
            e(f"    v_mul_f32 v{a}, s11, v{a}")
            e(f"    v_cvt_pk_bf16_f32 v{a}, 0, v{a}")
            e(f"    v_add_f32 v{a}, v{t0+1}, v{a}")
            e(f"    v_cvt_pk_bf16_f32 v{a}, 0, v{a}")
            e(f"    v_sqrt_f32 v{a}, v{a}")
            F(1)
            e(f"    v_cvt_pk_bf16_f32 v{a}, 0, v{a}")
            e(f"    v_rcp_f32 v{a}, v{a}")
            F(1)
        e(f"    v_readlane_b32 s12, v{a}, 63")
        F(max(2, len(fill)))
        for i in range(8):
            e(f"    v_pk_mul_f32 v[{p0+2*i}:{p0+2*i+1}], v[{p0+2*i}:{p0+2*i+1}], s[12:13] op_sel_hi:[1,0]")
        for h in range(2):
            for i in range(4 * h, 4 * h + 4):
                e(f"    v_cvt_pk_bf16_f32 v{x+i}, v{p0+2*i}, v{p0+2*i+1}")
            ad, o = addr(r, h)
            e(f"    global_store_dwordx4 {ad}, v[{x+4*h}:{x+4*h+3}], s[8:9] offset:{o} {stflag(r)}".rstrip())
    if tail:
        for ln in tail.split(";"):
            e("    " + ln.strip())
    e("L_end:")
    e("    s_endpgm")
    e('.section .rodata,"a"')
    e(".p2align 6")
    e(f".amdhsa_kernel {NAME}_kernel")
    e(f"  .amdhsa_next_free_vgpr {nv}")
    e("  .amdhsa_next_free_sgpr 16")
    e(f"  .amdhsa_accum_offset {(nv + 3) & ~3}")
    e("  .amdhsa_group_segment_fixed_size 0")
    e("  .amdhsa_kernarg_size 40")
    e("  .amdhsa_user_sgpr_count 2")
    e("  .amdhsa_user_sgpr_kernarg_segment_ptr 1")
    e("  .amdhsa_system_sgpr_workgroup_id_x 1")
    e("  .amdhsa_float_denorm_mode_32 3")
    e(".end_amdhsa_kernel")
    return "\n".join(L) + "\n"


if __name__ == "__main__":
    ap = argparse.ArgumentParser()
    ap.add_argument("-R", type=int, default=1)
    ap.add_argument("-W", type=int, default=4)
    ap.add_argument("--ld", default="")
    ap.add_argument("--st", default="")
    ap.add_argument("--sts", default=None, help="comma-separated per-row store flags")
    ap.add_argument("--gld", default="")
    ap.add_argument("--mimic", type=int, default=1)
    ap.add_argument("--mode", default="full")
    ap.add_argument("--strided", type=int, default=0)
    ap.add_argument("--tail", default="")
    ap.add_argument("-o", required=True)
    a = ap.parse_args()
    open(a.o, "w").write(gen(a.R, a.W, a.ld, a.st, a.gld, a.mimic, a.mode, a.strided,
                             a.sts.split(",") if a.sts is not None else None, a.tail))
```

```python
import argparse
from gen2 import HEADER, NAME, DPP

POL = {"p": "", "n": "nt", "s": "sc1", "z": "sc0 sc1 nt", "y": "sc1 nt", "o": "sc0 nt"}


def runs(bits):
    out = []
    i = 0
    while i < len(bits):
        j = i
        while j + 1 < len(bits) and bits[j + 1] == bits[j] + 1:
            j += 1
        out.append((i, j - i + 1, bits[i]))
        i = j + 1
    return out


def gen(kb, wave, wg, prog, ld="nt", gld="", mimic=1):
    lane = [4, 5, 6, 7, 8, 9]
    assert kb[0] == 10
    used = lane + kb + wave
    if wg is None:
        wg = [b for b in range(4, 24) if b not in used]
    assert sorted(used + wg) == list(range(4, 24))
    W = 1 << len(wave)
    K = 1 << len(kb)
    R = K // 2
    nwg = 1 << len(wg)
    L = []
    e = L.append
    e(HEADER.rstrip())
    e(f"; @launch grid=({nwg},1,1) block=({64*W},1,1) lds=0")
    e('.amdgcn_target "amdgcn-amd-amdhsa--gfx950"\n.text')
    e(f".globl {NAME}_kernel\n.p2align 8\n.type {NAME}_kernel,@function\n{NAME}_kernel:")
    e("    s_load_dwordx4 s[4:7], s[0:1], 0")
    e("    s_load_dwordx2 s[8:9], s[0:1], 16")
    e(f"    s_cmpk_ge_u32 s2, {nwg}\n    s_cbranch_scc1 L_end")
    rw = runs(wg)
    if len(rw) == 1:
        e(f"    s_lshl_b32 s3, s2, {rw[0][2]}")
    else:
        for n_, (i, n, p) in enumerate(rw):
            d = "s3" if n_ == 0 else "s10"
            e(f"    s_bfe_u32 {d}, s2, {hex((n << 16) | i)}")
            e(f"    s_lshl_b32 {d}, {d}, {p}")
            if n_:
                e("    s_or_b32 s3, s3, s10")
    if W > 1:
        e("    v_and_b32 v1, 63, v0")
        e("    v_lshlrev_b32 v1, 4, v1")
    else:
        e("    v_lshlrev_b32 v1, 4, v0")
    e("    v_or_b32 v2, s3, v1")
    rv = runs(wave)
    for (i, n, p) in rv:
        if i + n == len(wave):
            e(f"    v_lshrrev_b32 v3, {6+i}, v0")
        else:
            e(f"    v_bfe_u32 v3, v0, {6+i}, {n}")
        e(f"    v_lshl_or_b32 v2, v3, {p}, v2")
    offs = [sum(((k >> i) & 1) << p for i, p in enumerate(kb)) for k in range(K)]
    areg = {}
    amap = []
    for o in offs:
        hi = o & ~0xfff
        if hi not in areg:
            areg[hi] = 2 + len(areg)
            if hi:
                e(f"    v_or_b32 v{areg[hi]}, {hex(hi)}, v2")
        amap.append((areg[hi], o & 0xfff))
    nxt = max(4, 2 + len(areg))
    acc = nxt
    eps = acc + 1
    g0 = (eps + 1 + 3) & ~3
    glo = g0 + 8
    x0 = glo + 8
    p0 = x0 + 8 * R
    nv = p0 + 16
    e("    s_waitcnt lgkmcnt(0)")
    ops = []
    waited = set()
    state = {"const": False, "gprep": False}

    def wait(tag):
        if tag in waited:
            return
        last = max(i for i, o in enumerate(ops) if o == tag)
        e(f"    s_waitcnt vmcnt({len(ops) - 1 - last})")
        waited.update(ops[:last + 1])

    def consts():
        if not state["const"]:
            state["const"] = True
            e("    s_mov_b32 s10, 0xffff0000")
            e("    s_mov_b32 s11, 0x3a800000")
            e(f"    v_mov_b32 v{eps}, 0x358637bd")

    def gprep():
        if not state["gprep"]:
            state["gprep"] = True
            wait(("G", 0))
            for i in range(8):
                e(f"    v_and_b32 v{glo+i}, 0xffff, v{g0+i}")
                e(f"    v_and_b32 v{g0+i}, s10, v{g0+i}")

    def compute(r):
        x = x0 + 8 * r
        a = acc
        consts()
        e(f"    v_mov_b32 v{a}, 0")
        wait(("L", r))
        for i in range(8):
            e(f"    v_dot2c_f32_bf16 v{a}, v{x+i}, v{x+i}")
        gprep()
        fill = []
        for i in range(8):
            fill.append(f"    v_dot2_f32_bf16 v{p0+2*i}, v{x+i}, v{glo+i}, 0")
            fill.append(f"    v_dot2_f32_bf16 v{p0+2*i+1}, v{x+i}, v{g0+i}, 0")

        def F(k):
            for _ in range(k):
                e(fill.pop(0) if fill else "    s_nop 0")
        F(3)
        for dpp in DPP:
            e(f"    v_add_f32_dpp v{a}, v{a}, v{a} {dpp} bank_mask:0xf")
            if "bcast:31" not in dpp:
                F(2)
        if mimic == 0:
            e(f"    v_fma_f32 v{a}, v{a}, s11, v{eps}")
            e(f"    v_rsq_f32 v{a}, v{a}")
            F(1)
        else:
            e(f"    v_mul_f32 v{a}, s11, v{a}")
            e(f"    v_cvt_pk_bf16_f32 v{a}, 0, v{a}")
            e(f"    v_add_f32 v{a}, v{eps}, v{a}")
            e(f"    v_cvt_pk_bf16_f32 v{a}, 0, v{a}")
            e(f"    v_sqrt_f32 v{a}, v{a}")
            F(1)
            e(f"    v_cvt_pk_bf16_f32 v{a}, 0, v{a}")
            e(f"    v_rcp_f32 v{a}, v{a}")
            F(1)
        e(f"    v_readlane_b32 s12, v{a}, 63")
        F(max(2, len(fill)))
        for i in range(8):
            e(f"    v_pk_mul_f32 v[{p0+2*i}:{p0+2*i+1}], v[{p0+2*i}:{p0+2*i+1}], s[12:13] op_sel_hi:[1,0]")
        for i in range(8):
            e(f"    v_cvt_pk_bf16_f32 v{x+i}, v{p0+2*i}, v{p0+2*i+1}")

    for tok in prog.split(","):
        if tok == "B":
            e("    s_barrier")
        elif tok == "G":
            for h in range(2):
                e(f"    global_load_dwordx4 v[{g0+4*h}:{g0+4*h+3}], v1, s[6:7] offset:{h*1024} {gld}".rstrip())
            ops += [("G", 0)] * 2
        elif tok == "P":
            consts()
            gprep()
        elif tok[0] == "L":
            r = int(tok[1:])
            for k in (2 * r, 2 * r + 1):
                e(f"    global_load_dwordx4 v[{x0+4*k}:{x0+4*k+3}], v{amap[k][0]}, s[4:5] offset:{amap[k][1]} {ld}".rstrip())
            ops += [("L", r)] * 2
        elif tok[0] == "W":
            wait(("L", int(tok[1:])))
        elif tok[0] == "C":
            compute(int(tok[1:]))
        elif tok[0] == "S":
            r = int(tok[1:-1])
            for k in (2 * r, 2 * r + 1):
                e(f"    global_store_dwordx4 v{amap[k][0]}, v[{x0+4*k}:{x0+4*k+3}], s[8:9] offset:{amap[k][1]} {POL[tok[-1]]}".rstrip())
            ops += [("S", r)] * 2
        else:
            raise ValueError(tok)
    e("L_end:\n    s_endpgm")
    e('.section .rodata,"a"\n.p2align 6')
    e(f".amdhsa_kernel {NAME}_kernel")
    e(f"  .amdhsa_next_free_vgpr {nv}\n  .amdhsa_next_free_sgpr 16\n  .amdhsa_accum_offset {(nv + 3) & ~3}")
    e("  .amdhsa_group_segment_fixed_size 0\n  .amdhsa_kernarg_size 40\n  .amdhsa_user_sgpr_count 2")
    e("  .amdhsa_user_sgpr_kernarg_segment_ptr 1\n  .amdhsa_system_sgpr_workgroup_id_x 1")
    e("  .amdhsa_float_denorm_mode_32 3\n.end_amdhsa_kernel")
    return "\n".join(L) + "\n"


if __name__ == "__main__":
    ap = argparse.ArgumentParser()
    il = lambda s: [int(v) for v in s.split(",")] if s else []
    ap.add_argument("--k", type=il, default=[10, 13, 11])
    ap.add_argument("--wave", type=il, default=[12, 14])
    ap.add_argument("--wg", type=il, default=None)
    ap.add_argument("--prog", required=True)
    ap.add_argument("--ld", default="nt")
    ap.add_argument("--gld", default="")
    ap.add_argument("--mimic", type=int, default=1)
    ap.add_argument("-o", required=True)
    a = ap.parse_args()
    open(a.o, "w").write(gen(a.k, a.wave, a.wg, a.prog, a.ld, a.gld, a.mimic))
```
